```python
import torch

def _softmax(x, axis=-1):
    return torch.softmax(x, dim=axis)
def _gelu(x):
    return torch.nn.functional.gelu(x, approximate="tanh")
def _silu(x):
    return torch.nn.functional.silu(x)
def _sigmoid(x):
    return torch.sigmoid(x)
def _layernorm(x, axis=-1, eps=1e-5):
    m = x.mean(dim=axis, keepdim=True)
    v = x.var(dim=axis, keepdim=True, unbiased=False)
    return (x - m) / torch.sqrt(v + eps)
def _scatter_add(tgt, idx, src, axis=0):
    return tgt.clone().index_add_(axis, idx, src)
def _segment_sum(src, seg, n):
    out = torch.zeros((n,) + src.shape[1:], dtype=src.dtype)
    return out.index_add_(0, seg, src)
def _pad(x, pw):
    flat = tuple(v for pair in reversed(pw) for v in pair)
    return torch.nn.functional.pad(x, flat)

kernel_name = 'gated_mix__gqa_block_cached__dense_activation_squared_relu__decode'

def setup_inputs():

    _w = (lambda a: (lambda t: t.to(torch.bfloat16) if t.is_floating_point() else t)(torch.as_tensor(a)))
    def _A_setup():
        B, Sq, D = 8, 1, 512
        Hq, Hkv, Sk, Dh = 32, 8, 4096, 128
        assert Hq % Hkv == 0, (Hq, Hkv)
        return {
            "x": _w((lambda *s: torch.randn(*s, dtype=torch.bfloat16) * 0.05)(B, Sq, D)),
            "k_cache": _w((lambda *s: torch.randn(*s, dtype=torch.bfloat16) * 6.4)(B, Hkv, Sk, Dh)),
            "v_cache": _w((lambda *s: torch.randn(*s, dtype=torch.bfloat16) * 0.4)(B, Hkv, Sk, Dh)),
            "wq": _w((lambda *s: torch.randn(*s, dtype=torch.bfloat16) * 6.4)(D, Hq * Dh) * (D ** -0.5)),
            "wo": _w((lambda *s: torch.randn(*s, dtype=torch.bfloat16) * 0.4)(Hq * Dh, D) * ((Hq * Dh) ** -0.5)),
        }
    _A_in = _A_setup()

    def _B_setup():
        B, S, D, F = 8, 1, 512, 1792
        return {
            "x": _w((lambda *s: torch.randn(*s, dtype=torch.bfloat16) * 0.05)(B, S, D)),
            "w1": _w((lambda *s: torch.randn(*s, dtype=torch.bfloat16) * 0.05)(D, F)),
            "b1": _w((lambda *s: torch.randn(*s, dtype=torch.bfloat16) * 0.05)(F)),
            "w2": _w((lambda *s: torch.randn(*s, dtype=torch.bfloat16) * 0.05)(F, D)),
            "b2": _w((lambda *s: torch.randn(*s, dtype=torch.bfloat16) * 0.05)(D)),
        }
    _B_in = _B_setup()

    return {
        "A_x": _A_in["x"],
        "A_k_cache": _A_in["k_cache"],
        "A_v_cache": _A_in["v_cache"],
        "A_wq": _A_in["wq"],
        "A_wo": _A_in["wo"],
        "B_x": _B_in["x"],
        "B_w1": _B_in["w1"],
        "B_b1": _B_in["b1"],
        "B_w2": _B_in["w2"],
        "B_b2": _B_in["b2"],
        "gate_w": _w((lambda *s: torch.randn(*s, dtype=torch.bfloat16) * 0.05)(512) * 16.0),
    }

def reference(A_x, A_k_cache, A_v_cache, A_wq, A_wo, B_x, B_w1, B_b1, B_w2, B_b2, gate_w):
    def _A_ref(x, k_cache, v_cache, wq, wo):
        B, Sq, D = x.shape
        Hq, Dh = 32, 128
        Hkv = k_cache.shape[1]
        rep = Hq // Hkv
        q = (lambda x, *d: x.permute(*d))((x @ wq).reshape(B, Sq, Hq, Dh), 0, 2, 1, 3)
        k = (lambda x, n, axis: torch.repeat_interleave(x, n, dim=axis))(k_cache, rep, axis=1)
        v = (lambda x, n, axis: torch.repeat_interleave(x, n, dim=axis))(v_cache, rep, axis=1)
        scores = torch.einsum("bhqd,bhkd->bhqk", q, k) * (Dh ** -0.5)
        p = _softmax(scores, axis=-1)
        o = torch.einsum("bhqk,bhkd->bhqd", p, v)
        return (lambda x, *d: x.permute(*d))(o, 0, 2, 1, 3).reshape(B, Sq, Hq * Dh) @ wo

    def _B_ref(x, w1, b1, w2, b2):
        h = torch.einsum("bsd,df->bsf", x, w1) + b1
        zero = torch.zeros_like(h)
        r = torch.where(h > zero, h, zero)
        h = r * r
        out = torch.einsum("bsf,fd->bsd", h, w2) + b2
        return out

    x = A_x
    g = _sigmoid((x * gate_w).sum(-1, keepdims=True))
    a = _A_ref(x, A_k_cache, A_v_cache, A_wq, A_wo)
    b = _B_ref(x, B_w1, B_b1, B_w2, B_b2)
    return g * a + (1 - g) * b
```

```python
import re

NAME = "gated_mix__gqa_block_cached__dense_activation_squared_relu__decode"

REG_RE = re.compile(r"\b([vsa])(\d+)\b|\b([vsa])\[(\d+):(\d+)\]|\b(vcc|exec|m0|scc)\b")


def regs_of(tok):
    out = []
    for m in REG_RE.finditer(tok):
        if m.group(1):
            out.append((m.group(1), int(m.group(2))))
        elif m.group(3):
            out += [(m.group(3), i) for i in range(int(m.group(4)), int(m.group(5)) + 1)]
        else:
            out.append((m.group(6), 0))
    return out


def split_ops(rest):
    ops, cur, depth = [], "", 0
    for ch in rest:
        if ch in "[(":
            depth += 1
        if ch in "])":
            depth -= 1
        if ch == "," and depth == 0:
            ops.append(cur.strip())
            cur = ""
        else:
            cur += ch
    if cur.strip():
        ops.append(cur.strip())
    return ops


TRANS = ("v_exp_f32", "v_log_f32", "v_rcp_f32", "v_rsq_f32", "v_sqrt_f32", "v_sin_f32", "v_cos_f32")


class Ins:
    def __init__(self, text):
        self.text = text
        t = text.split(";")[0].strip()
        self.label = t.endswith(":")
        self.op = ""
        self.dst, self.src = [], []
        self.states = 1
        if not t or self.label or t.startswith("."):
            self.states = 0
            return
        parts = t.split(None, 1)
        self.op = op = parts[0]
        rest = parts[1] if len(parts) > 1 else ""
        ops = split_ops(rest)
        self.mods = rest
        self.is_mfma = op.startswith("v_mfma")
        self.is_valu = op.startswith("v_") and not self.is_mfma
        self.is_vmem = op.startswith(("buffer_", "global_", "flat_"))
        self.is_ds = op.startswith("ds_")
        self.is_salu = op.startswith("s_")
        self.is_dpp = "_dpp" in op or "quad_perm" in rest or "row_" in rest
        self.is_trans = op.replace("_e32", "").replace("_e64", "") in TRANS
        self.is_perml = op.startswith("v_permlane")
        if op == "s_nop":
            self.states = int(ops[0], 0) + 1
            return
        R = [regs_of(o.split(" ")[0] if i < len(ops) - 1 else o.split(" ")[0]) for i, o in enumerate(ops)]
        if self.is_mfma:
            self.dst = R[0]
            self.srcA, self.srcB, self.srcC = R[1], R[2], R[3]
            self.src = R[1] + R[2] + R[3]
            self.passes = 8 if "32x32" in op else 4
            if "16x16x4_f32" in op:
                self.passes = 8
        elif self.is_perml:
            self.dst = R[0] + R[1]
            self.src = R[0] + R[1]
        elif self.is_valu:
            self.dst = R[0]
            self.src = [r for x in R[1:] for r in x]
            if op.startswith(("v_add_co", "v_sub_co", "v_addc_co", "v_subb_co")):
                self.dst = R[0] + R[1]
                self.src = [r for x in R[2:] for r in x]
            if op.startswith(("v_fmac", "v_pk_fmac", "v_dot2c")) or (self.is_dpp):
                self.src = self.src + R[0]
            if op.startswith("v_cmpx"):
                self.dst = self.dst + [("exec", 0)]
        elif self.is_vmem:
            lds = re.search(r"\blds\b", rest) is not None or "_lds_" in op
            if "load" in op and not lds:
                self.dst = R[0]
                self.src = [r for x in R[1:] for r in x]
            else:
                self.src = [r for x in R for r in x]
                if lds:
                    self.src.append(("m0", 0))
            self.is_store = "store" in op or "atomic" in op
            self.wide = ("x4" in op or "x3" in op) and "store" in op
            if self.is_store:
                self.data = R[0] if op.startswith("buffer_") else R[1]
        elif self.is_ds:
            if op.startswith(("ds_read", "ds_bpermute", "ds_permute", "ds_swizzle")) or "_rtn" in op:
                self.dst = R[0]
                self.src = [r for x in R[1:] for r in x]
            else:
                self.src = [r for x in R for r in x]
        elif self.is_salu:
            if op.startswith(("s_cmp", "s_cbranch", "s_branch", "s_waitcnt", "s_barrier", "s_endpgm", "s_sleep", "s_setprio", "s_bitcmp")):
                self.src = [r for x in R for r in x]
            else:
                self.dst = R[0] if R else []
                self.src = [r for x in R[1:] for r in x]
                if "saveexec" in op:
                    self.dst = self.dst + [("exec", 0)]


def check_hazards(lines):
    ins = [Ins(l) for l in lines]
    probs = []
    for i, c in enumerate(ins):
        if not c.op:
            continue
        dist = 0
        for k in range(i - 1, max(-1, i - 40), -1):
            p = ins[k]
            if p.op in ("s_branch", "s_endpgm", "s_setpc_b64"):
                break
            if not p.op:
                continue
            need = 0
            why = ""
            pd = set(p.dst)
            cs = set(c.src)
            cd = set(c.dst)
            vg = lambda s: {r for r in s if r[0] in "va" and r[0] != "vcc"}
            sg = lambda s: {r for r in s if r[0] in ("s", "vcc")}
            if p.is_valu:
                if c.is_mfma and vg(pd) & cs:
                    need, why = 2, "VALU->MFMA src"
                if c.is_valu and c.is_dpp and vg(pd) & cs:
                    need, why = max(need, 2), "VALU->DPP"
                if c.is_perml and vg(pd) & cs:
                    need, why = max(need, 2), "VALU->permlane"
                if c.op.startswith(("v_readfirstlane", "v_readlane")) and vg(pd) & cs:
                    need, why = max(need, 1), "VALU->readlane"
                if p.is_trans and c.is_valu and not c.is_trans and vg(pd) & cs:
                    need, why = max(need, 1), "trans->VALU"
                if p.is_trans and (c.is_vmem or c.is_ds) and vg(pd) & cs:
                    need, why = max(need, 1), "trans->mem"
                if c.is_vmem and sg(pd) & cs:
                    need, why = max(need, 5), "VALU sgpr->VMEM"
                if c.is_valu and sg(pd) & cs:
                    need, why = max(need, 2), "VALU sgpr->VALU const"
                if c.is_valu and c.op.startswith("v_cndmask") and ("vcc", 0) in pd and "vcc" in c.mods:
                    need, why = max(need, 2), "vcc->cndmask"
                if ("exec", 0) in pd and (c.is_mfma or c.is_perml):
                    need, why = max(need, 4), "VALU exec->mfma"
                if ("exec", 0) in pd and c.is_dpp:
                    need, why = max(need, 5), "VALU exec->dpp"
            if p.is_mfma:
                n_rd = {4: 8, 8: 12}[p.passes]
                if not c.is_mfma and (pd & cs or (pd & cd)):
                    need, why = max(need, n_rd), "MFMA D->other"
                if c.is_mfma:
                    if pd & set(c.srcA + c.srcB):
                        need, why = max(need, n_rd), "MFMA D->A/B"
                    if pd & set(c.srcC):
                        if p.dst == c.srcC and p.passes == c.passes and p.op == c.op:
                            pass
                        else:
                            need, why = max(need, {4: 6, 8: 10}[p.passes]), "MFMA D->C overlap"
                    elif pd & cd:
                        need, why = max(need, n_rd), "MFMA WAW"
                if c.is_valu and set(p.srcC) & cd:
                    need, why = max(need, {4: 3, 8: 7}[p.passes]), "MFMA C WAR"
            if p.is_vmem and getattr(p, "wide", False) and set(p.data) & cd:
                need, why = max(need, 2), "store data WAR"
            if p.is_salu and ("m0", 0) in pd and ("m0", 0) in cs and (c.is_vmem or c.is_ds):
                need, why = max(need, 1), "m0->lds dma"
            if need > dist:
                probs.append(f"line {i}: '{c.text.strip()}' needs {need} after '{p.text.strip()}' (line {k}), has {dist}: {why}")
            dist += p.states
            if dist >= 20:
                break
    return probs


class Asm:
    def __init__(self):
        self.L = []
        self.vm = []
        self.weak = set()

    def __call__(self, s):
        for line in s.split("\n"):
            line = line.strip()
            if line:
                self.L.append(line)

    def label(self, s):
        self.L.append(s + ":")

    def vmem(self, s, tag=None, weak=False):
        self.L.append(s)
        self.vm.append(tag)
        if weak:
            self.weak.add(tag)

    def wait_vm(self, tag):
        idx = max(i for i, t in enumerate(self.vm) if t == tag)
        n = sum(1 for t in self.vm[idx + 1:] if t not in self.weak)
        self.L.append(f"s_waitcnt vmcnt({min(n, 63)})")
        assert n <= 63, n

    def vm_reset(self):
        self.vm = []

    def text(self, launch, vgpr=256, header=""):
        body = []
        for l in self.L:
            body.append(l if l.endswith(":") or l.startswith(".") else "    " + l)
        return (
            header
            + f"; @launch {launch}\n"
            + '.amdgcn_target "amdgcn-amd-amdhsa--gfx950"\n.text\n'
            + f".globl {NAME}_kernel\n.p2align 8\n.type {NAME}_kernel,@function\n{NAME}_kernel:\n"
            + "\n".join(body)
            + '\n.section .rodata,"a"\n.p2align 6\n'
            + f".amdhsa_kernel {NAME}_kernel\n"
            + f"  .amdhsa_next_free_vgpr {vgpr}\n  .amdhsa_next_free_sgpr 102\n"
            + f"  .amdhsa_accum_offset {min(256, (vgpr + 3) // 4 * 4)}\n"
            + "  .amdhsa_group_segment_fixed_size 0\n  .amdhsa_kernarg_size 112\n"
            + "  .amdhsa_user_sgpr_count 2\n  .amdhsa_user_sgpr_kernarg_segment_ptr 1\n"
            + "  .amdhsa_system_sgpr_workgroup_id_x 1\n.end_amdhsa_kernel\n"
        )
```

```python
import sys
from asmlib import Asm, check_hazards, NAME

H2 = 0
H1 = 32768
HF = 43008
ST = 44032
MB = 45056
XT = 46080
QP = 49152
HP = 65536
STAMP = 255 << 20
L_ST = 256
L_QX = 1024
L_O = 2048
L_WQ = 2048
L_W1 = 18432
L_B = 18432
L_H = 26624
L_RED = 28672
L_T = 30720
L_W2 = 34816
L_WO = 43008
L_END = 59392
SMAP = {0: 0, 6: 1, 13: 2, 1: 3, 2: 4, 3: 5, 4: 6, 5: 7, 7: 1, 8: 2, 9: 3, 10: 4, 11: 5, 12: 6}
LOG2E = 0x3FB8AA3B
SCALE = 0x3DB504F3
SPIN_MAX = 200000
DPPM = "row_mask:0xf bank_mask:0xf"


def gen(path, stamps=False, kvflags="nt", wflags="nt", win=3, vwin=4, npre=2, nticks=10, notail=False,
        ptevery=6, cper=3, SL=0x15000, sl1=16, sl2=24, g=4, sready=True, asym=0, onebar=True, pq=0, h1first=False, aux=False, xb=True, rasym=0, prio=0, endwin=8, endn=8, lt=1, fback=4, lq=1):
    NG, NGR, SLOT0 = 9, 36, 52
    NSP = (256 - SLOT0) // 4 - NGR
    a = Asm()

    def stamp(i):
        if stamps:
            a(f"s_memrealtime s[{72 + 2 * SMAP[i]}:{73 + 2 * SMAP[i]}]")

    def flush_stamps(idx, ids=False):
        if not stamps:
            return
        a("s_waitcnt lgkmcnt(0)")
        a("s_mov_b64 exec, 1")
        a("s_lshl_b32 s66, s2, 7")
        a(f"s_add_u32 s66, s66, {STAMP}")
        a("v_mov_b32 v3, s66")
        for i in idx:
            r = 72 + 2 * SMAP[i]
            a(f"v_mov_b32 v22, s{r}")
            a(f"v_mov_b32 v23, s{r + 1}")
            a(f"buffer_store_dwordx2 v[22:23], v3, s[12:15], 0 offen offset:{8 * i}")
            a("s_nop 1")
        if ids:
            a("s_getreg_b32 s67, hwreg(HW_REG_XCC_ID)")
            a("v_mov_b32 v22, s67")
            a("v_mov_b32 v23, 0")
            a(f"buffer_store_dwordx2 v[22:23], v3, s[12:15], 0 offen offset:{8 * 14}")
            a("s_nop 1")
            a(f"buffer_store_dwordx2 v[22:23], v3, s[12:15], 0 offen offset:{8 * 15}")
        a("s_mov_b64 exec, -1")

    def setexec(v):
        a(f"s_mov_b32 exec_lo, 0x{v:08x}")
        a(f"s_mov_b32 exec_hi, 0x{v:08x}")

    def slot(n):
        return SLOT0 + 4 * n

    def rbf(r):
        a(f"v_cvt_pk_bf16_f32 v{r}, v{r}, v{r}")
        a(f"v_and_b32 v{r}, s70, v{r}")

    a("s_cmp_ge_u32 s2, 256")
    a("s_cbranch_scc1 L_end")
    a("s_load_dwordx16 s[16:31], s[0:1], 0")
    a("s_load_dwordx8 s[32:39], s[0:1], 64")
    a("s_load_dwordx4 s[40:43], s[0:1], 96")
    stamp(0)
    a("v_lshrrev_b32 v3, 6, v0")
    a("v_and_b32 v0, 63, v0")
    a("v_readfirstlane_b32 s3, v3")
    for r in range(4, 8):
        a(f"v_mov_b32 v{r}, 0")
    a("ds_write_b128 v4, v[4:7]")
    a("s_add_u32 s3, s3, 7")
    a("s_and_b32 s3, s3, 7")
    a("s_and_b32 s48, s2, 7")
    a("s_lshr_b32 s49, s2, 3")
    if xb:
        assert not asym
        a("s_mov_b32 s50, s48")
        a("s_lshr_b32 s51, s49, 2")
        a("s_and_b32 s52, s49, 3")
        a("s_lshl_b32 s66, s48, 5")
        a("s_add_u32 s66, s66, s49")
    else:
        a("s_lshr_b32 s66, s48, 1")
        a("s_lshl_b32 s66, s66, 5")
        a("s_add_u32 s66, s66, s49")
        a("s_lshr_b32 s50, s66, 4")
        a("s_bfe_u32 s51, s66, 0x30001")
        a("s_lshl_b32 s66, s66, 1")
        a("s_and_b32 s67, s48, 1")
        a("s_add_u32 s66, s66, s67")
        a("s_and_b32 s52, s66, 3")
    NSE = {0: 4, 1: 12, 2: 20}[asym]
    NSO = 512 - 252 - NSE - 7 * (NGR - asym)
    assert g == 1 or not asym
    a("s_lshl_b32 s53, s66, 18")
    if asym:
        a(f"s_mul_i32 s54, s67, {(NSE - 4) * 1024}")
        a("s_add_u32 s53, s53, s54")
        a("s_cmp_eq_u32 s67, 0")
        a("s_cselect_b32 s54, 7168, 2.0")
        a("s_cselect_b32 s55, 0, 0xff800000")
    if rasym:
        assert g == 1 and not asym
        NSO = 11 - rasym
        NSE = 8
        a(f"s_cmp_lt_u32 s3, {rasym}")
        a("s_cselect_b32 s54, 7168, 2.0")
        a("s_cselect_b32 s55, 0, 0xff800000")
    drop = asym or (1 if rasym else 0)
    a(f"s_mul_i32 s56, s3, {g * 1024}")
    a("s_add_u32 s56, s56, s53")
    a("s_mov_b32 s57, s56")
    a("v_bfe_u32 v3, v0, 2, 2")
    a("v_lshlrev_b32 v1, 8, v3")
    a("v_lshrrev_b32 v3, 4, v0")
    a("v_lshl_add_u32 v1, v3, 6, v1")
    a("v_and_b32 v3, 3, v0")
    a("v_lshl_add_u32 v1, v3, 4, v1")
    a("v_lshlrev_b32 v2, 4, v0")
    a("s_mov_b32 s6, 0x4000000")
    a("s_mov_b32 s7, 0x20000")
    a("s_mov_b32 s10, 0x4000000")
    a("s_mov_b32 s11, 0x20000")
    a("s_mov_b32 s14, 0x10000000")
    a("s_mov_b32 s15, 0x20000")
    a("s_mov_b32 s47, 0x20000")
    a(f"s_mov_b32 s68, {SCALE}")
    a(f"s_mov_b32 s69, {LOG2E}")
    a("s_mov_b32 s70, 0xffff0000")
    a("s_cmp_eq_u32 s3, 7")
    a("s_waitcnt lgkmcnt(0)")
    a("s_mov_b32 s4, s18")
    a("s_mov_b32 s5, s19")
    a("s_mov_b32 s8, s20")
    a("s_mov_b32 s9, s21")
    a("s_mov_b32 s12, s42")
    a("s_mov_b32 s13, s43")
    a("s_cbranch_scc1 L_service")

    def setup_consts():
        a("v_and_b32 v3, 1, v0")
        a("v_cmp_eq_u32 vcc, 0, v3")
        a("v_mov_b32 v22, 0x0c0c0100")
        a("v_mov_b32 v23, 0x0c0c0302")
        a("v_mov_b32 v24, 0x01000c0c")
        a("v_mov_b32 v25, 0x03020c0c")
        a("v_cndmask_b32 v22, v24, v22, vcc")
        a("v_cndmask_b32 v23, v25, v23, vcc")
        a("v_and_b32 v3, 2, v0")
        a("v_cmp_eq_u32 vcc, 0, v3")
        a("v_mov_b32 v24, 0x0c0c0c0c")
        a("v_mov_b32 v20, 0xff800000")
        a("v_cndmask_b32 v8, v24, v22, vcc")
        a("v_cndmask_b32 v9, v22, v24, vcc")
        a("v_cndmask_b32 v10, v24, v23, vcc")
        a("v_cndmask_b32 v11, v23, v24, vcc")
        for r in range(12, 20):
            a(f"v_mov_b32 v{r}, 0")
        a("v_mov_b32 v21, 0")

    def ksum(i):
        rs = [slot(i * 4 + q) for q in range(4)]
        for c in range(4):
            for q in range(4):
                if c == 0:
                    a(f"v_mov_b32_dpp v{22 + q}, v{rs[q]} quad_perm:[0,0,0,0] {DPPM}")
                else:
                    a(f"v_add_f32_dpp v{22 + q}, v{rs[q] + c}, v{22 + q} quad_perm:[{c},{c},{c},{c}] {DPPM}")

    def kround(i, first_dummy=99):
        a("v_cvt_pk_bf16_f32 v26, v22, v23")
        a("v_cvt_pk_bf16_f32 v27, v24, v25")
        a("v_lshlrev_b32 v22, 16, v26")
        a("v_and_b32 v23, s70, v26")
        a("v_lshlrev_b32 v24, 16, v27")
        a("v_and_b32 v25, s70, v27")
        for q in range(4):
            a(f"v_mul_f32 v{22 + q}, s68, v{22 + q}")
        for q in range(4):
            if i * 4 + q >= first_dummy:
                a(f"v_add_f32 v{22 + q}, s55, v{22 + q}")
        a(f"v_cvt_pk_bf16_f32 v{32 + 2 * i}, v22, v23")
        a(f"v_cvt_pk_bf16_f32 v{33 + 2 * i}, v24, v25")
        a("v_max3_f32 v20, v20, v22, v23")
        a("v_max3_f32 v20, v20, v24, v25")

    def rowred(op, r):
        for sw in ("v_permlane16_swap_b32", "v_permlane32_swap_b32"):
            a(f"v_mov_b32 v22, v{r}")
            a("s_nop 1")
            a(f"{sw} v{r}, v22")
            a("s_nop 1")
            a(f"{op} v{r}, v{r}, v22")

    def kphase(ng, tick, nowait=False, kfree=None, fd=99):
        for i in range(ng + 1):
            if i < ng:
                if not nowait:
                    a.wait_vm(("K", i * 4 + 3))
                for q in range(4):
                    r = slot(i * 4 + q)
                    a(f"v_mfma_f32_16x16x32_bf16 v[{r}:{r + 3}], v[{r}:{r + 3}], v[4:7], 0")
            elif ng == 1:
                a("s_nop 3")
            if i >= 1:
                if i == 1:
                    a("s_nop 3")
                ksum(i - 1)
                if kfree is not None:
                    kfree[0] = i
            tick()
            if i >= 1:
                kround(i - 1, fd)
        rowred("v_max_f32", 20)
        rbf(20)

    def pphase(ng, tick, every=4):
        for pr in range(ng * 2):
            if pr % every == 1:
                tick()
            r = 32 + pr
            x, y = (22, 23) if pr % 2 == 0 else (24, 25)
            a(f"v_lshlrev_b32 v{x}, 16, v{r}")
            a(f"v_and_b32 v{y}, s70, v{r}")
            a(f"v_sub_f32 v{x}, v{x}, v20")
            a(f"v_sub_f32 v{y}, v{y}, v20")
            a(f"v_mul_f32 v{x}, s69, v{x}")
            a(f"v_mul_f32 v{y}, s69, v{y}")
            a(f"v_exp_f32 v{x}, v{x}")
            a(f"v_exp_f32 v{y}, v{y}")
            a("s_nop 0")
            a(f"v_add_f32 v21, v21, v{x}")
            a(f"v_cvt_pk_bf16_f32 v{r}, v{x}, v{y}")
            a(f"v_add_f32 v21, v21, v{y}")
        rowred("v_add_f32", 21)

    def post_stats():
        a("v_bfe_u32 v3, v0, 2, 2")
        a("v_lshlrev_b32 v3, 6, v3")
        a("s_lshl_b32 s66, s3, 3")
        a("v_add_u32 v3, s66, v3")
        a(f"ds_write_b64 v3, v[20:21] offset:{L_ST}")

    def abuild(t):
        x = 22 + 2 * (t % 3)
        e = t % 2
        a(f"v_perm_b32 v{x}, v{32 + t // 2}, v{32 + t // 2}, v{8 + 2 * e}")
        a(f"v_perm_b32 v{x + 1}, v{32 + t // 2}, v{32 + t // 2}, v{9 + 2 * e}")

    def pv(t, sl):
        x = 22 + 2 * (t % 3)
        r = slot(sl)
        a(f"v_mfma_f32_16x16x16_bf16 v[12:15], v[{x}:{x + 1}], v[{r}:{r + 1}], v[12:15]")
        a(f"v_mfma_f32_16x16x16_bf16 v[16:19], v[{x}:{x + 1}], v[{r + 2}:{r + 3}], v[16:19]")

    def sload(kind, t, sl):
        r = slot(sl)
        va, srd, cur = ("v1", "s[4:7]", "s56") if kind == "K" else ("v2", "s[8:11]", "s57")
        a.vmem(f"buffer_load_dwordx4 v[{r}:{r + 3}], {va}, {srd}, {cur} offen offset:{(t % g) * 1024} {kvflags}", (kind, t), weak=(t >= NGR - drop))
        if t % g == g - 1 and t < NGR - 1:
            a(f"s_add_u32 {cur}, {cur}, {'s54' if drop and t == NGR - 1 - drop else 7 * g * 1024}")

    def poll(lbl, loads, regs, pre=False, sleep=0):
        a("s_mov_b32 s65, 0")
        a("s_mov_b64 vcc, -1")
        if pre:
            a(f"s_branch {lbl}chk")
        elif sleep:
            a(f"s_branch {lbl}ld")
        a.label(lbl)
        if sleep:
            a(f"s_sleep {sleep}")
            a.label(lbl + "ld")
        a("s_mov_b64 exec, vcc")
        loads()
        if pre:
            a.label(lbl + "chk")
        a("s_add_u32 s65, s65, 1")
        a(f"s_cmp_gt_u32 s65, {SPIN_MAX}")
        a("s_waitcnt vmcnt(0)")
        a(f"s_cbranch_scc1 {lbl}go")
        h = len(regs) // 2
        for t, rg in ((22, regs[:h]), (23, regs[h:])):
            a(f"v_max3_u32 v{t}, v{rg[0]}, v{rg[1]}, v{rg[2]}")
        k = 3
        while k + 1 < h:
            for t, rg in ((22, regs[:h]), (23, regs[h:])):
                a(f"v_max3_u32 v{t}, v{t}, v{rg[k]}, v{rg[k + 1]}")
            k += 2
        assert k == h - 1
        a(f"v_max3_u32 v22, v22, v{regs[h - 1]}, v{regs[-1]}")
        a("v_max_u32 v22, v22, v23")
        a("v_cmp_eq_u32 vcc, -1, v22")
        a(f"s_cbranch_vccnz {lbl}")
        a.label(lbl + "go")
        a("s_mov_b64 exec, -1")

    def lds_wait(lbl, off, val, sleep):
        a("s_mov_b32 s66, 0")
        a.label(lbl)
        a(f"ds_read_b32 v22, v3 offset:{off}")
        a("s_add_u32 s66, s66, 1")
        a("s_waitcnt lgkmcnt(0)")
        a(f"s_cmp_gt_u32 s66, {SPIN_MAX * 8}")
        a(f"s_cbranch_scc1 {lbl}go")
        a("v_readfirstlane_b32 s67, v22")
        a("s_nop 0")
        a(f"s_cmp_eq_u32 s67, {val}")
        a(f"s_cbranch_scc1 {lbl}go")
        a(f"s_sleep {sleep}")
        a(f"s_branch {lbl}")
        a.label(lbl + "go")

    def tr_addr(v):
        a(f"v_lshrrev_b32 {v}, 4, v0")
        a("v_bfe_u32 v31, v0, 2, 2")
        a(f"v_lshl_add_u32 {v}, {v}, 3, v31")
        a(f"v_lshlrev_b32 {v}, 7, {v}")
        a("v_and_b32 v31, 3, v0")
        a(f"v_lshl_add_u32 {v}, v31, 3, {v}")

    def tred4(r):
        a("s_nop 0")
        a(f"v_permlane32_swap_b32 v{r}, v{r + 1}")
        a(f"v_permlane32_swap_b32 v{r + 2}, v{r + 3}")
        a("s_nop 0")
        a(f"v_add_f32 v{r}, v{r}, v{r + 1}")
        a(f"v_add_f32 v{r + 2}, v{r + 2}, v{r + 3}")
        a("s_nop 1")
        a(f"v_permlane16_swap_b32 v{r}, v{r + 2}")
        a("s_nop 1")
        a(f"v_add_f32 v{r}, v{r}, v{r + 2}")

    a.vm_reset()
    vslot = {t: (NGR + t if t < NSP else t - NSP) for t in range(NGR)}
    for t in range(NGR):
        if t == win:
            setup_consts()
            a("s_barrier")
        if t >= win:
            a(f"s_waitcnt vmcnt({win - 1})")
        sload("K", t, t)
    for t in range(npre):
        a(f"s_waitcnt vmcnt({win - 1})")
        sload("V", t, vslot[t])
    a("v_mov_b32 v3, 0")
    lds_wait("L_qw", 0, 1, 1)
    a(f"ds_read_b128 v[4:7], v1 offset:{L_QX}")
    if prio:
        a("s_cmp_lt_u32 s3, 4")
        a("s_cbranch_scc1 L_noprio")
        a("s_setprio 1")
        a.label("L_noprio")
    tk = [npre]
    kfree = [0]

    def tick():
        t = tk[0]
        if t >= npre + nticks or (t >= NSP and vslot[t] // 4 >= kfree[0]):
            return
        tk[0] += 1
        sload("V", t, vslot[t])

    tick()
    a("s_waitcnt lgkmcnt(0)")
    kphase(NG, tick, kfree=kfree, fd=(NGR - drop if drop else 99))
    if prio == 2:
        a("s_setprio 0")
    pphase(NG, tick, every=ptevery)
    nissued = tk[0]
    post_stats()
    a("v_mov_b32 v3, 0")
    a("v_mov_b32 v29, 1")
    a("s_waitcnt lgkmcnt(0)")
    a("s_mov_b64 exec, 1")
    a("ds_add_u32 v3, v29 offset:4")
    a("s_mov_b64 exec, -1")
    a("s_mov_b32 s44, s24")
    a("s_mov_b32 s45, s25")
    a("s_mov_b32 s46, 0x400000")
    a("s_mov_b32 s60, s32")
    a("s_mov_b32 s61, s33")
    a("s_mov_b32 s62, 1835008")
    a("s_mov_b32 s63, 0x20000")
    a("s_lshl_b32 s66, s49, 2")
    a("s_add_u32 s66, s66, s3")
    a("s_lshl_b32 s67, s48, 7")
    a("s_lshl_b32 s98, s66, 15")
    a("s_add_u32 s98, s98, s67")
    a("s_lshl_b32 s58, s66, 14")
    a("s_add_u32 s58, s58, s67")
    a("s_add_u32 s59, s58, 7168")
    a("s_lshl_b32 s64, s3, 12")
    a(f"s_add_u32 s64, s64, {L_WO}")
    a("s_lshl_b32 s66, s3, 11")
    a(f"s_add_u32 m0, s66, {L_W2}")
    a("v_lshrrev_b32 v50, 3, v0")
    a("v_and_b32 v28, 7, v0")
    a("v_and_b32 v51, 2, v50")
    a("v_xor_b32 v28, v28, v51")
    a("v_lshlrev_b32 v28, 4, v28")
    a("v_lshl_add_u32 v28, v50, 10, v28")
    a("v_xor_b32 v30, 64, v28")
    for k in range(1, 4):
        a(f"s_add_u32 s{98 + k}, s98, {k * 7168}")
    stamp(6)

    npc = [0]

    def pieces(raw=False):
        if lt and not raw:
            npc[0] += 1
            a("s_cmp_lg_u32 s92, 0")
            a(f"s_cbranch_scc1 L_pc{npc[0]}")
        for k in range(2):
            a(f"buffer_load_dwordx4 v{28 if k % 2 == 0 else 30}, s[60:63], s{58 + k} offen offset:{k * 1024} {wflags} lds")
        a("s_mov_b32 m0, s64")
        a("s_nop 0")
        for k in range(4):
            a(f"buffer_load_dwordx4 v{28 if k % 2 == 0 else 30}, s[44:47], s{98 + k} offen offset:{k * 1024} {wflags} lds")
        if lt and not raw:
            a.label(f"L_pc{npc[0]}")

    abuild(0)
    abuild(1)
    c = 0

    def consume():
        nonlocal c
        pv(c, vslot[c])
        if c + 2 < NGR:
            abuild(c + 2)
        c += 1

    for t in range(nissued, NGR):
        w = endwin if (endwin and t >= NGR - endn) else vwin
        a(f"s_waitcnt vmcnt({w - 1})")
        sload("V", t, vslot[t])
        if lt and t == NGR - 1 - fback:
            a("ds_write_b32 v3, v29 offset:8")
        for _ in range(cper):
            if c <= t - w:
                consume()
    a("s_mov_b32 s92, 0")
    a("v_mov_b32 v31, 0")
    a("s_lshl_b32 s66, s3, 11")
    a("v_add_u32 v3, s66, v2")
    while c < NGR:
        a.wait_vm(("V", c))
        consume()
    stamp(13)
    if lt:
        a("ds_read_b32 v31, v31 offset:12")
    a(f"s_nop {5 if lt else 6}")
    a(f"ds_write_b128 v3, v[12:15] offset:{L_O}")
    a(f"ds_write_b128 v3, v[16:19] offset:{L_O + 1024}")
    a("s_cmp_ge_u32 s3, 4")
    a("s_waitcnt lgkmcnt(0)")
    a("s_cbranch_scc1 L_aux")
    if lt:
        a("v_readfirstlane_b32 s92, v31")
        a("s_nop 0")
        a("s_cmp_eq_u32 s92, 0")
        a("s_cbranch_scc1 L_notlate")
        pieces(raw=True)
        a.label("L_notlate")
    a("s_barrier")

    if notail:
        a("s_cmp_lg_u32 s3, 0")
        a("s_cbranch_scc1 L_end")
        flush_stamps([0, 6, 13], ids=True)
        a("s_endpgm")
    a(f"ds_read_b128 v[104:107], v2 offset:{L_H}")
    a(f"ds_read_b128 v[108:111], v2 offset:{L_H + 1024}")
    if not h1first:
        if not pq:
            a("s_barrier")
        pieces()
    tr_addr("v3")
    a("v_bfe_u32 v51, v0, 3, 2")
    a("v_xor_b32 v51, s3, v51")
    a("v_lshl_add_u32 v51, v51, 5, v3")
    a("v_lshrrev_b32 v48, 3, v0")
    a("v_and_b32 v31, 3, v0")
    a("v_lshlrev_b32 v21, 6, v31")
    a("v_lshl_add_u32 v21, v48, 2, v21")
    a("v_and_b32 v31, 4, v0")
    a("v_lshl_add_u32 v21, v31, 3, v21")
    a(f"v_mul_u32_u24 v20, {4 * SL}, v48")
    a("v_and_b32 v31, 7, v0")
    a("v_lshl_add_u32 v48, v31, 4, v20")
    a(f"s_mul_i32 s88, s3, {SL}")
    a("s_lshl_b32 s89, s48, 7")
    a("s_add_u32 s90, s88, s89")
    a(f"s_add_u32 s90, s90, {XT}")
    a("s_lshl_b32 s89, s48, 12")
    a("s_add_u32 s88, s88, s89")
    a("s_lshl_b32 s89, s49, 7")
    a("s_add_u32 s88, s88, s89")
    a("s_getreg_b32 s91, hwreg(HW_REG_XCC_ID)")
    a("s_lshl_b32 s89, s3, 10")
    a("v_add_u32 v49, s89, v2")
    a("v_and_b32 v50, 15, v0")
    a("v_lshlrev_b32 v50, 7, v50")
    a("v_lshrrev_b32 v31, 4, v0")
    a("v_lshl_add_u32 v50, v31, 4, v50")
    a(f"s_mul_i32 s94, s49, {SL}")
    a("s_lshr_b32 s67, s3, 1")
    a("s_lshl_b32 s67, s67, 11")
    a("s_add_u32 s94, s94, s67")
    a("s_and_b32 s67, s3, 1")
    a("s_lshl_b32 s67, s67, 6")
    a("s_add_u32 s94, s94, s67")
    a(f"s_add_u32 s94, s94, {H1}")
    a("s_add_u32 s95, s94, 4096")

    def h1loads():
        a("buffer_load_dwordx4 v[88:91], v50, s[12:15], s94 offen sc1")
        a("buffer_load_dwordx4 v[92:95], v50, s[12:15], s95 offen sc1")

    if h1first:
        a("s_barrier")
        h1loads()
        pieces()
        a("s_waitcnt vmcnt(4)")
        a("v_max3_u32 v22, v88, v89, v90")
        a("v_max3_u32 v23, v92, v93, v94")
        a("v_max3_u32 v22, v22, v91, v95")
        a("v_max_u32 v22, v22, v23")
        a("v_cmp_eq_u32 vcc, -1, v22")
        a("s_cbranch_vccz L_h1skip")
        a("s_mov_b64 exec, vcc")
        h1loads()
        a("s_mov_b64 exec, -1")
        a.label("L_h1skip")
    a("buffer_load_dword v20, v20, s[12:15], s90 offen sc1")
    def w2_reads():
        for ks in range(2):
            for hf in range(2):
                r = 96 + 4 * ks + 2 * hf
                a(f"ds_read_b64_tr_b16 v[{r}:{r + 1}], v51 offset:{L_W2 + (ks * 32 + hf * 4) * 128}")

    def wo_read(ks):
        for hf in range(2):
            r = 32 + 4 * ks + 2 * hf
            a(f"ds_read_b64_tr_b16 v[{r}:{r + 1}], v51 offset:{L_WO + (ks * 32 + hf * 4) * 128}")

    def b_read(ks):
        for u in range(2):
            r = 56 + 16 * u + 4 * ks
            a(f"ds_read_b128 v[{r}:{r + 3}], v2 offset:{L_B + u * 4096 + ks * 1024}")

    def o_mfma(ks, u):
        r = 56 + 16 * u + 4 * ks
        cc = "0" if ks == 0 and u == 0 else "v[12:15]"
        a(f"v_mfma_f32_16x16x32_bf16 v[12:15], v[{32 + 4 * ks}:{35 + 4 * ks}], v[{r}:{r + 3}], {cc}")

    def f_mfma():
        a("v_mfma_f32_16x16x32_bf16 v[52:55], v[96:99], v[104:107], 0")
        a("v_mfma_f32_16x16x32_bf16 v[52:55], v[100:103], v[108:111], v[52:55]")

    if not onebar:
        h1loads()
        a("s_waitcnt vmcnt(3)")
        a("s_barrier")
        w2_reads()
        for ks in range(4):
            wo_read(ks)
        a("s_waitcnt lgkmcnt(8)")
        f_mfma()
    poll("L_h1", h1loads, list(range(88, 96)), pre=(h1first or not onebar))
    a(f"ds_write_b128 v49, v[88:91] offset:{L_B}")
    a(f"ds_write_b128 v49, v[92:95] offset:{L_B + 4096}")
    stamp(9)
    a("v_cmp_eq_u32 s[96:97], s91, v20")
    a("s_waitcnt lgkmcnt(0)")
    a("s_barrier")
    if onebar:
        w2_reads()
        for ks in range(2):
            wo_read(ks)
            b_read(ks)
        a("s_waitcnt lgkmcnt(8)")
        f_mfma()
        wo_read(2)
        b_read(2)
        a("s_waitcnt lgkmcnt(8)")
        o_mfma(0, 0)
        o_mfma(0, 1)
        wo_read(3)
        b_read(3)
        for ks in range(1, 4):
            a(f"s_waitcnt lgkmcnt({12 - 4 * ks})")
            o_mfma(ks, 0)
            o_mfma(ks, 1)
    else:
        for ks in range(4):
            b_read(ks)
        for ks in range(4):
            for u in range(2):
                a(f"s_waitcnt lgkmcnt({7 - 2 * ks - u})")
                o_mfma(ks, u)
    a("s_nop 7")
    for k in range(4):
        a(f"v_add_f32_dpp v{52 + k}, v{12 + k}, v{12 + k} row_ror:8 row_mask:0xf bank_mask:0x3")
    for k in range(4):
        a(f"v_min_u32 v{52 + k}, -2, v{52 + k}")
        a(f"ds_bpermute_b32 v{24 + k}, v21, v{52 + k}")
    a("s_mov_b64 exec, s[96:97]")
    a("s_waitcnt lgkmcnt(0)")
    a("s_cbranch_execz L_nofast")
    a("buffer_store_dwordx4 v[24:27], v48, s[12:15], s88 offen")
    a.label("L_nofast")
    a("s_not_b64 exec, s[96:97]")
    a("s_cbranch_execz L_noslow")
    a("buffer_store_dwordx4 v[24:27], v48, s[12:15], s88 offen sc1")
    a.label("L_noslow")
    a("s_mov_b64 exec, -1")
    stamp(10)
    if stamps:
        a("s_cmp_lg_u32 s3, 0")
        a("s_cbranch_scc1 L_end")
        flush_stamps([0, 6, 13, 9, 10], ids=True)
    a("s_endpgm")

    a.label("L_aux")
    a("s_cmp_lg_u32 s3, 6")
    a("s_barrier")
    if notail:
        a("s_endpgm")
    a("s_cbranch_scc1 L_end")
    a("s_barrier")
    a.label("L_fin")
    a(f"s_mul_i32 s88, s49, {SL}")
    a("s_lshl_b32 s89, s48, 12")
    a("s_add_u32 s88, s88, s89")
    a(f"ds_read_b128 v[52:55], v2 offset:{L_RED}")
    a("s_waitcnt lgkmcnt(0)")
    a("v_min_u32 v53, 8190, v53")
    a("s_barrier")
    if not onebar:
        a("s_barrier")

    def h2loads():
        for k in range(4):
            a(f"buffer_load_dwordx4 v[{64 + 4 * k}:{67 + 4 * k}], v2, s[12:15], s88 offen offset:{1024 * k} sc1")

    poll("L_h2", h2loads, list(range(64, 80)))
    for k in range(4):
        a(f"v_add_f32 v{64 + k}, v{64 + k}, v{68 + k}")
        a(f"v_add_f32 v{72 + k}, v{72 + k}, v{76 + k}")
    for k in range(4):
        a(f"v_add_f32 v{64 + k}, v{64 + k}, v{72 + k}")
    tred4(64)
    a("s_nop 1")
    a(f"v_add_f32_dpp v64, v64, v64 row_ror:8 {DPPM}")
    stamp(11)
    rbf(64)
    a("v_add_f32 v64, v64, v54")
    rbf(64)
    a("v_mul_f32 v64, v64, v52")
    rbf(64)
    a("s_nop 1")
    a(f"v_add_f32_dpp v64, v64, v64 row_ror:4 {DPPM}")
    a("v_cvt_pk_bf16_f32 v64, v64, v64")
    setexec(0x000f000f)
    a("global_store_short v53, v64, s[38:39]")
    a("s_mov_b64 exec, -1")
    if stamps:
        a("s_waitcnt vmcnt(0)")
    stamp(12)
    flush_stamps([11, 12])
    a("s_endpgm")

    a.label("L_service")
    a("s_setprio 3")

    def dma(n, vaddr, lds, step):
        for i in range(n):
            if i % 4 == 0:
                a(f"s_mov_b32 m0, {lds + i * 1024}")
                if i:
                    a(f"s_add_u32 s66, s66, {step + 3072}")
                else:
                    a("s_nop 0")
            else:
                a(f"s_add_u32 s66, s66, {step - 1024}")
            a(f"buffer_load_dwordx4 {vaddr}, s[44:47], s66 offen offset:{(i % 4) * 1024} {wflags} lds")

    assert NSE <= 12

    def vs(t):
        return 160 + 4 * t

    a("v_lshrrev_b32 v3, 3, v0")
    a("v_and_b32 v22, 7, v0")
    a("v_lshlrev_b32 v22, 4, v22")
    a("v_lshl_add_u32 v23, v3, 13, v22")
    a("s_lshl_b32 s94, s51, 3")
    a("s_add_u32 s94, s94, s50")
    a("s_lshl_b32 s66, s52, 20")
    a("s_lshl_b32 s67, s94, 7")
    a("s_add_u32 s66, s66, s67")
    a("s_mov_b32 s44, s22")
    a("s_mov_b32 s45, s23")
    a("s_mov_b32 s46, 0x400000")
    dma(16, "v23", L_WQ, 65536)
    a("v_mul_u32_u24 v24, 3584, v3")
    a("v_add_u32 v24, v24, v22")
    a("v_and_b32 v3, 7, v0")
    a("v_lshlrev_b32 v3, 10, v3")
    a("v_lshrrev_b32 v22, 4, v0")
    a("v_lshl_add_u32 v3, v22, 4, v3")
    a("s_lshl_b32 s66, s52, 8")
    a("v_add_u32 v22, s66, v3")
    for ks in range(4):
        a(f"global_load_dwordx4 v[{200 + 4 * ks}:{203 + 4 * ks}], v22, s[16:17] offset:{ks * 64}")
    a("s_lshl_b32 s66, s48, 7")
    a("v_add_u32 v22, s66, v3")
    for ks in range(2):
        a(f"global_load_dwordx4 v[{192 + 4 * ks}:{195 + 4 * ks}], v22, s[16:17] offset:{ks * 64}")
    a("s_mul_i32 s66, s48, 229376")
    a("s_lshl_b32 s67, s49, 7")
    a("s_add_u32 s66, s66, s67")
    a("s_cmp_lt_u32 s49, 28")
    a("s_cselect_b32 s66, s66, 0x7f000000")
    a("s_mov_b32 s44, s28")
    a("s_mov_b32 s45, s29")
    a("s_mov_b32 s46, 1835008")
    dma(8, "v24", L_W1, 28672)
    a("s_barrier")
    a("s_lshr_b32 s98, s94, 1")
    a(f"s_mul_i32 s98, s98, {SL}")
    a("s_and_b32 s66, s50, 1")
    a("s_lshl_b32 s66, s66, 2")
    a("s_add_u32 s66, s66, s52")
    a("s_lshl_b32 s66, s66, 7")
    a("s_add_u32 s98, s98, s66")
    a(f"s_add_u32 s97, s98, {ST}")
    a(f"s_add_u32 s98, s98, {MB}")
    a("s_getreg_b32 s67, hwreg(HW_REG_XCC_ID)")
    a(f"s_mul_i32 s90, s49, {SL}")
    a("v_mov_b32 v60, s67")
    a("s_lshl_b32 s67, s48, 7")
    a("s_add_u32 s101, s90, s67")
    a(f"s_add_u32 s66, s101, {XT}")
    a(f"s_add_u32 s101, s101, {HF}")
    for k in range(4):
        a(f"v_mov_b32 v{56 + k}, -1")
    a("s_mov_b64 exec, 1")
    a("buffer_store_dwordx2 v[4:5], v4, s[12:15], s98 offen sc1")
    a("buffer_store_dword v60, v4, s[12:15], s66 offen sc1")
    a("s_mov_b64 exec, 0xff")
    a("buffer_store_dwordx4 v[56:59], v2, s[12:15], s97 offen sc1")
    a("buffer_store_dwordx4 v[56:59], v2, s[12:15], s101 offen sc1")
    a("s_mov_b64 exec, -1")
    a("v_lshrrev_b32 v51, 4, v0")
    a(f"v_mul_u32_u24 v29, {SL}, v51")
    a("v_bfe_u32 v3, v0, 3, 1")
    a("v_lshl_add_u32 v50, v3, 11, v29")
    a("v_and_b32 v3, 7, v0")
    a("v_lshl_add_u32 v50, v3, 4, v50")
    a(f"s_mul_i32 s71, s51, {4 * SL}")
    a("s_and_b32 s96, s52, 1")
    a("s_lshl_b32 s96, s96, 3")
    a("s_add_u32 s96, s96, s50")
    a("s_lshl_b32 s96, s96, 7")
    a("s_lshr_b32 s66, s52, 1")
    a("s_lshl_b32 s66, s66, 12")
    a("s_add_u32 s96, s96, s66")
    a("s_add_u32 s96, s96, s71")
    a(f"s_add_u32 s96, s96, {H1}")
    a("buffer_store_dwordx4 v[56:59], v50, s[12:15], s96 offen sc1")
    a(f"s_add_u32 s99, s71, {MB}")
    a("s_lshl_b32 s88, s48, 12")
    a("s_add_u32 s88, s88, s90")
    for k in range(4):
        a(f"buffer_store_dwordx4 v[56:59], v2, s[12:15], s88 offen offset:{1024 * k} sc1")
    tr_addr("v28")
    a("v_lshlrev_b32 v27, 7, v3")
    a("v_lshl_add_u32 v30, v51, 4, v27")
    a("v_lshlrev_b32 v46, 8, v3")
    a("v_lshl_add_u32 v46, v51, 4, v46")
    a("v_and_b32 v3, 15, v0")
    a("v_lshlrev_b32 v3, 4, v3")
    a("v_add_u32 v29, v29, v3")
    a("v_lshl_add_u32 v27, v51, 11, v3")
    a("v_lshlrev_b32 v51, 3, v51")
    a(f"s_mul_i32 s66, s52, {8 * SL}")
    a("s_lshl_b32 s67, s94, 8")
    a("s_add_u32 s66, s66, s67")
    a(f"s_add_u32 s66, s66, {QP}")
    a("s_waitcnt vmcnt(0)")
    for ks in range(4):
        for nt in range(4):
            for hf in range(2):
                r = 64 + 16 * ks + 4 * nt + 2 * hf
                a(f"ds_read_b64_tr_b16 v[{r}:{r + 1}], v28 offset:{L_WQ + (ks * 32 + hf * 4) * 128 + nt * 32}")
        if ks >= 1:
            a("s_waitcnt lgkmcnt(8)")
            k2 = ks - 1
            for nt in range(4):
                r = 64 + 16 * k2 + 4 * nt
                cc = "0" if k2 == 0 else f"v[{128 + 4 * nt}:{131 + 4 * nt}]"
                a(f"v_mfma_f32_16x16x32_bf16 v[{128 + 4 * nt}:{131 + 4 * nt}], v[{r}:{r + 3}], v[{200 + 4 * k2}:{203 + 4 * k2}], {cc}")
    for nt in range(4):
        for hf in range(2):
            r = 160 + 4 * nt + 2 * hf
            a(f"ds_read_b64_tr_b16 v[{r}:{r + 1}], v28 offset:{L_W1 + (hf * 4) * 128 + nt * 32}")
    a("s_waitcnt lgkmcnt(8)")
    for nt in range(4):
        r = 64 + 48 + 4 * nt
        a(f"v_mfma_f32_16x16x32_bf16 v[{128 + 4 * nt}:{131 + 4 * nt}], v[{r}:{r + 3}], v[212:215], v[{128 + 4 * nt}:{131 + 4 * nt}]")
    for nt in range(4):
        for hf in range(2):
            r = 176 + 4 * nt + 2 * hf
            a(f"ds_read_b64_tr_b16 v[{r}:{r + 1}], v28 offset:{L_W1 + (32 + hf * 4) * 128 + nt * 32}")
    for nt in range(4):
        a(f"ds_write_b128 v46, v[{128 + 4 * nt}:{131 + 4 * nt}] offset:{L_T + nt * 64}")
    a(f"s_add_u32 s67, s66, {4 * SL}")
    a("s_waitcnt lgkmcnt(0)")
    a(f"ds_read_b128 v[128:131], v2 offset:{L_T}")
    a(f"ds_read_b128 v[132:135], v2 offset:{L_T + 1024}")
    for ks in range(2):
        for nt in range(4):
            r = 160 + 16 * ks + 4 * nt
            cc = "0" if ks == 0 else f"v[{144 + 4 * nt}:{147 + 4 * nt}]"
            a(f"v_mfma_f32_16x16x32_bf16 v[{144 + 4 * nt}:{147 + 4 * nt}], v[{r}:{r + 3}], v[{192 + 4 * ks}:{195 + 4 * ks}], {cc}")
    a("s_waitcnt lgkmcnt(0)")
    a("buffer_store_dwordx4 v[128:131], v29, s[12:15], s66 offen sc1")
    a("buffer_store_dwordx4 v[132:135], v29, s[12:15], s67 offen sc1")
    a("s_lshl_b32 s67, s48, 8")
    a("s_add_u32 s66, s90, s67")
    a(f"s_add_u32 s66, s66, {HP}")
    a("s_add_u32 s67, s66, 8192")
    a("s_cmp_ge_u32 s49, 28")
    a("s_cbranch_scc1 L_nohp")
    for nt in range(4):
        a(f"ds_write_b128 v46, v[{144 + 4 * nt}:{147 + 4 * nt}] offset:{L_T + 2048 + nt * 64}")
    a("s_waitcnt lgkmcnt(0)")
    a(f"ds_read_b128 v[136:139], v2 offset:{L_T + 2048}")
    a(f"ds_read_b128 v[140:143], v2 offset:{L_T + 3072}")
    a("s_waitcnt lgkmcnt(0)")
    a("buffer_store_dwordx4 v[136:139], v27, s[12:15], s66 offen sc1")
    a("buffer_store_dwordx4 v[140:143], v27, s[12:15], s67 offen sc1")
    a.label("L_nohp")
    a(f"s_mul_i32 s66, s50, {SL}")
    a("s_lshl_b32 s67, s51, 11")
    a("s_add_u32 s94, s66, s67")
    a(f"s_add_u32 s94, s94, {QP}")
    a("s_lshl_b32 s95, s48, 11")
    a("s_add_u32 s95, s95, s90")
    a(f"s_add_u32 s95, s95, {HP}")
    a("s_cmp_lt_u32 s49, 28")
    a("s_cselect_b32 s95, s95, 0x7f000000")
    a(f"s_add_u32 s56, s53, {(245 + rasym if rasym else 252) * 1024}")
    if rasym:
        a("s_mov_b32 s57, 2.0")
    if asym:
        a("s_bitcmp1_b32 s48, 0")
        a("s_cselect_b32 s57, 2.0, s56")
        a(f"s_cselect_b32 s66, {7 * asym * 1024}, 0")
        a("s_sub_u32 s56, s56, s66")
    a("v_lshrrev_b32 v22, 4, v0")
    a("v_lshrrev_b32 v23, 1, v22")
    a("v_and_b32 v22, 1, v22")
    a("v_lshl_add_u32 v22, v22, 1, v23")
    a("v_and_b32 v23, 15, v0")
    a("v_lshl_add_u32 v45, v23, 2, v22")
    a("v_and_b32 v22, 15, v45")
    a("v_lshlrev_b32 v45, 1, v45")
    a("s_and_b32 s67, s49, 3")
    a("s_lshl_b32 s67, s67, 4")
    a("s_lshl_b32 s71, s48, 6")
    a("s_add_u32 s67, s67, s71")
    a("v_add_u32 v22, s67, v22")
    a("v_lshlrev_b32 v41, 1, v22")
    a("s_lshr_b32 s71, s49, 2")
    a("s_lshl_b32 s71, s71, 10")
    a("v_add_u32 v3, s71, v2")
    a("v_lshrrev_b32 v7, 3, v0")
    a("v_and_b32 v24, 7, v0")
    a(f"v_mul_u32_u24 v7, {SL}, v7")
    a("v_lshl_add_u32 v7, v24, 7, v7")
    a("s_lshl_b32 s66, s51, 5")
    a("v_mov_b32 v22, s66")
    a("v_mov_b32 v31, 1")
    a("v_mov_b32 v6, 1")
    a("s_mov_b32 s44, s30")
    a("s_mov_b32 s45, s31")
    a("s_mov_b32 s46, 3584")
    a("s_lshl_b32 s66, s49, 7")
    a("s_waitcnt vmcnt(0)")
    a("s_mov_b64 exec, 1")
    a("global_atomic_add v31, v22, v31, s[40:41] sc0 sc1")
    a("s_mov_b64 exec, -1")
    stamp(2)
    a("global_load_dwordx4 v[32:35], v3, s[16:17]")
    a("global_load_dwordx4 v[36:39], v2, s[36:37]")
    a("global_load_ushort v42, v41, s[34:35]")
    a("v_add_u32 v41, s71, v41")
    for t in range(NSE):
        if t == NSO:
            a(f"s_waitcnt vmcnt({3 + 2 * NSO})")
            a("v_readfirstlane_b32 s100, v31")
        if t and t % 4 == 0:
            a("s_add_u32 s57, s57, 4096")
            a("s_add_u32 s56, s56, 4096")
        cur = "s56" if t < NSO else "s57"
        a(f"buffer_load_dwordx4 v[{slot(t)}:{slot(t) + 3}], v1, s[4:7], {cur} offen offset:{(t % 4) * 1024} {kvflags}")
        a(f"buffer_load_dwordx4 v[{vs(t)}:{vs(t) + 3}], v2, s[8:11], {cur} offen offset:{(t % 4) * 1024} {kvflags}")
    if NSE == NSO:
        a(f"s_waitcnt vmcnt({3 + 2 * NSO})")
        a("v_readfirstlane_b32 s100, v31")
    a("buffer_load_ushort v44, v45, s[44:47], s66 offen")
    a("s_mov_b32 s65, 0")
    a("s_and_b32 s100, s100, 31")
    a("s_cmp_lg_u32 s100, 31")
    a("s_cbranch_scc1 L_bar")
    a("s_mov_b32 exec_hi, 0")
    a("buffer_store_dword v6, v7, s[12:15], s99 offen sc1")
    a("s_mov_b64 exec, 1")
    a("v_mov_b32 v31, 1")
    a("global_atomic_add v31, v4, v31, s[40:41] offset:16 sc0 sc1")
    a("s_mov_b64 exec, -1")
    a("s_branch L_bargo")
    a.label("L_bar")
    a(f"s_sleep {sl1}")
    a("s_load_dwordx2 s[92:93], s[42:43], s98 glc")
    a("s_add_u32 s65, s65, 1")
    a("s_waitcnt lgkmcnt(0)")
    a(f"s_cmp_gt_u32 s65, {SPIN_MAX}")
    a("s_cbranch_scc1 L_bargo")
    a("s_cmp_eq_u32 s92, 0")
    a("s_cbranch_scc1 L_bar")
    a.label("L_bargo")
    stamp(3)
    for kp in range(4):
        if kp:
            a(f"s_add_u32 s94, s94, {8 * SL}")
        for hf in range(2):
            r = 128 + 8 * kp + 4 * hf
            a(f"buffer_load_dwordx4 v[{r}:{r + 3}], v2, s[12:15], s94 offen offset:{hf * 1024} sc1")
    a("buffer_load_dwordx4 v[104:107], v2, s[12:15], s95 offen sc1")
    a("buffer_load_dwordx4 v[108:111], v2, s[12:15], s95 offen offset:1024 sc1")
    a("v_lshlrev_b32 v23, 3, v0")
    a("s_waitcnt vmcnt(0)")
    for k in range(8):
        a(f"v_add_f32 v{128 + k}, v{128 + k}, v{136 + k}")
        a(f"v_add_f32 v{144 + k}, v{144 + k}, v{152 + k}")
    for k in range(8):
        a(f"v_add_f32 v{128 + k}, v{128 + k}, v{144 + k}")
    for k in range(4):
        a(f"v_cvt_pk_bf16_f32 v{136 + k}, v{128 + 2 * k}, v{129 + 2 * k}")
    a(f"ds_write_b64 v23, v[136:137] offset:{L_QX}")
    a(f"ds_write_b64 v23, v[138:139] offset:{L_QX + 512}")
    a("s_cmp_lg_u32 s100, 31")
    a("s_waitcnt lgkmcnt(0)")
    a("ds_write_b32 v4, v6")
    stamp(4)
    a(f"ds_read_b128 v[120:123], v1 offset:{L_QX}")
    a("s_waitcnt vmcnt(0)")
    a("s_cbranch_scc1 L_nottop")
    a("v_readfirstlane_b32 s67, v31")
    a("s_nop 0")
    a("s_and_b32 s67, s67, 7")
    a("s_cmp_lg_u32 s67, 7")
    a("s_cbranch_scc1 L_nottop")
    a(f"s_mov_b32 s71, {MB + 4}")
    for k in range(4):
        a("buffer_store_dword v6, v7, s[12:15], s71 offen sc1")
        if k < 3:
            a(f"s_add_u32 s71, s71, {8 * SL}")
    a.label("L_nottop")
    a("s_setprio 0")
    a("v_lshlrev_b32 v44, 16, v44")
    for k in range(4):
        a(f"v_add_f32 v{104 + k}, v{104 + k}, v{108 + k}")
    tred4(104)
    rbf(104)
    a("v_add_f32 v104, v104, v44")
    rbf(104)
    a("v_max_f32 v104, 0, v104")
    a("v_mul_f32 v104, v104, v104")
    a("v_cvt_pk_bf16_f32 v104, v104, v104")
    a(f"ds_write_b16 v45, v104 offset:{L_T}")
    a("s_waitcnt lgkmcnt(0)")
    a(f"ds_read_b128 v[104:107], v2 offset:{L_T}")
    for k in range(4):
        a(f"v_mov_b32 v{4 + k}, v{120 + k}")
    a("s_waitcnt lgkmcnt(0)")
    for k in range(4):
        a(f"v_min_u32 v{104 + k}, -2, v{104 + k}")
    a("s_mov_b64 exec, 0xff")
    a("buffer_store_dwordx4 v[104:107], v2, s[12:15], s101 offen sc1")
    a("s_mov_b64 exec, -1")
    for k in range(4):
        a(f"v_lshlrev_b32 v{144 + 2 * k}, 16, v{32 + k}")
        a(f"v_and_b32 v{145 + 2 * k}, s70, v{32 + k}")
        a(f"v_lshlrev_b32 v{152 + 2 * k}, 16, v{36 + k}")
        a(f"v_and_b32 v{153 + 2 * k}, s70, v{36 + k}")
    for k in range(8):
        a(f"v_mul_f32 v{144 + k}, v{144 + k}, v{152 + k}")
    for k in range(4):
        a(f"v_cvt_pk_bf16_f32 v{152 + k}, v{144 + 2 * k}, v{145 + 2 * k}")
    for k in range(4):
        a(f"v_lshlrev_b32 v{144 + 2 * k}, 16, v{152 + k}")
        a(f"v_and_b32 v{145 + 2 * k}, s70, v{152 + k}")
    a("v_add_f32 v144, v144, v145")
    a("v_add_f32 v146, v146, v147")
    a("v_add_f32 v148, v148, v149")
    a("v_add_f32 v150, v150, v151")
    a("v_add_f32 v144, v144, v146")
    a("v_add_f32 v148, v148, v150")
    a("v_add_f32 v40, v144, v148")
    for m in ("quad_perm:[1,0,3,2]", "quad_perm:[2,3,0,1]", "row_ror:4", "row_ror:8"):
        a("s_nop 1")
        a(f"v_add_f32_dpp v40, v40, v40 {m} {DPPM}")
    rowred("v_add_f32", 40)
    rbf(40)
    a("v_mul_f32 v40, s69, v40")
    a("v_exp_f32 v40, -v40")
    a("s_nop 0")
    a("v_add_f32 v40, 1.0, v40")
    a("v_rcp_f32 v40, v40")
    a("s_nop 0")
    rbf(40)
    a("v_sub_f32 v43, 1.0, v40")
    rbf(43)
    a("v_lshlrev_b32 v42, 16, v42")
    a("s_mov_b32 s66, 0xf0f0f0f0")
    a("s_mov_b32 s67, 0xf0f0f0f0")
    a("v_cndmask_b32 v40, v40, v43, s[66:67]")
    a("v_cndmask_b32 v42, 0, v42, s[66:67]")
    a(f"ds_write_b128 v2, v[40:43] offset:{L_RED}")
    setup_consts()
    kphase(NSE // 4, lambda: None, nowait=True, fd=(NSO if drop else 99))
    pphase(NSE // 4, lambda: None)
    abuild(0)
    abuild(1)
    a("s_nop 0")
    for t in range(NSE):
        pv(t, (vs(t) - SLOT0) // 4)
        if t + 2 < NSE:
            abuild(t + 2)
    post_stats()
    stamp(5)
    a("v_mov_b32 v3, 0")
    lds_wait("L_stw", 4, 7, 4)
    a("v_lshlrev_b32 v3, 3, v51")
    for q in range(4):
        a(f"ds_read_b128 v[{144 + 4 * q}:{147 + 4 * q}], v3 offset:{L_ST + 16 * q}")
    a("s_waitcnt lgkmcnt(0)")
    a("v_max3_f32 v20, v144, v146, v148")
    a("v_max3_f32 v20, v20, v150, v152")
    a("v_max3_f32 v20, v20, v154, v156")
    a("v_max_f32 v20, v20, v158")
    for w in range(8):
        a(f"v_sub_f32 v{144 + 2 * w}, v{144 + 2 * w}, v20")
    for w in range(8):
        a(f"v_mul_f32 v{144 + 2 * w}, s69, v{144 + 2 * w}")
    for w in range(8):
        a(f"v_exp_f32 v{144 + 2 * w}, v{144 + 2 * w}")
    a("s_nop 0")
    a("v_mul_f32 v21, v144, v145")
    for w in range(1, 8):
        a(f"v_fmac_f32 v21, v{144 + 2 * w}, v{145 + 2 * w}")
    a("v_min_u32 v20, -2, v20")
    a("v_min_u32 v21, -2, v21")
    setexec(0x00010001)
    a("buffer_store_dwordx2 v[20:21], v51, s[12:15], s97 offen sc1")
    a("s_mov_b64 exec, -1")
    a("s_lshl_b32 s66, s52, 7")
    a("s_sub_u32 s97, s97, s66")
    a(f"s_add_u32 s95, s90, {HF}")
    a("s_add_u32 s58, s42, s97")
    a("s_addc_u32 s59, s43, 0")
    a("s_mov_b32 s65, 0")
    a.label("L_bar2")
    a(f"s_sleep {sl2}")
    a("s_load_dwordx2 s[92:93], s[42:43], s98 glc")
    if sready:
        for sp in range(4):
            a(f"s_load_dword s{60 + sp}, s[58:59], {128 * sp + 28} glc")
    a("s_add_u32 s65, s65, 1")
    a("s_waitcnt lgkmcnt(0)")
    a(f"s_cmp_gt_u32 s65, {SPIN_MAX}")
    a("s_cbranch_scc1 L_bar2go")
    a("s_cmp_eq_u32 s93, 0")
    a("s_cbranch_scc1 L_bar2")
    if sready:
        a("s_max_u32 s60, s60, s61")
        a("s_max_u32 s62, s62, s63")
        a("s_max_u32 s60, s60, s62")
        a("s_cmp_eq_u32 s60, -1")
        a("s_cbranch_scc1 L_bar2")
    a.label("L_bar2go")

    def lastloads():
        for sp in range(4):
            a(f"buffer_load_dwordx2 v[{96 + 2 * sp}:{97 + 2 * sp}], v51, s[12:15], s97 offen offset:{128 * sp} sc1")
        a("buffer_load_dwordx4 v[104:107], v30, s[12:15], s95 offen sc1")
        a("buffer_load_dwordx4 v[108:111], v30, s[12:15], s95 offen offset:64 sc1")

    poll("L_stp", lastloads, list(range(96, 112)), sleep=sl2)
    a(f"ds_write_b128 v2, v[104:107] offset:{L_H}")
    a(f"ds_write_b128 v2, v[108:111] offset:{L_H + 1024}")
    a("v_max3_f32 v24, v96, v98, v100")
    a("v_max_f32 v24, v24, v102")
    for sp in range(4):
        a(f"v_sub_f32 v{96 + 2 * sp}, v{96 + 2 * sp}, v24")
    a("v_sub_f32 v20, v20, v24")
    for sp in range(4):
        a(f"v_mul_f32 v{96 + 2 * sp}, s69, v{96 + 2 * sp}")
    a("v_mul_f32 v20, s69, v20")
    for sp in range(4):
        a(f"v_exp_f32 v{96 + 2 * sp}, v{96 + 2 * sp}")
    a("v_exp_f32 v20, v20")
    a("v_mul_f32 v21, v96, v97")
    for sp in range(1, 4):
        a(f"v_fmac_f32 v21, v{96 + 2 * sp}, v{97 + 2 * sp}")
    a("v_rcp_f32 v21, v21")
    a("s_nop 0")
    a("v_mul_f32 v20, v20, v21")
    for w in range(8):
        a(f"v_mul_f32 v{144 + 2 * w}, v20, v{144 + 2 * w}")
    for k in range(8):
        a(f"v_mul_f32 v{12 + k}, v158, v{12 + k}")
    a("s_waitcnt lgkmcnt(0)")
    stamp(1)
    if lt:
        a(f"s_add_u32 s66, s90, {H1}")
        a("s_add_u32 s58, s42, s66")
        a("s_addc_u32 s59, s43, 0")
        a("v_mov_b32 v3, 0")
        lds_wait("L_nd", 8, 1, 2)
        offs = [0, 3 * 128, 5 * 128, 14 * 128, 4096 + 128, 4096 + 6 * 128, 4096 + 10 * 128, 4096 + 15 * 128]
        regs = [60, 61, 62, 63, 64, 92, 93, 95]
        for r, o in zip(regs, offs):
            a(f"s_load_dword s{r}, s[58:59], {o} glc")
        a("s_mov_b32 s66, 0")
        a("s_waitcnt lgkmcnt(0)")
        for r in regs:
            a(f"s_cmp_lg_u32 s{r}, -1")
            a("s_addc_u32 s66, s66, 0")
        a(f"s_cmp_ge_u32 s66, {lt}")
        a("s_cselect_b32 s66, 1, 0")
        a("v_mov_b32 v22, s66")
        a("ds_write_b32 v3, v22 offset:12")
        a("s_waitcnt lgkmcnt(0)")
    a("s_setprio 3")
    a("s_barrier")
    stamp(7)
    for w in range(7):
        a(f"ds_read_b128 v[{64 + 8 * w}:{67 + 8 * w}], v2 offset:{L_O + 2048 * w}")
        a(f"ds_read_b128 v[{68 + 8 * w}:{71 + 8 * w}], v2 offset:{L_O + 2048 * w + 1024}")
    for w in range(7):
        a(f"s_waitcnt lgkmcnt({12 - 2 * w})")
        for k in range(8):
            a(f"v_fmac_f32 v{12 + k}, v{144 + 2 * w}, v{64 + 8 * w + k}")
    for k in range(4):
        a(f"v_cvt_pk_bf16_f32 v{24 + k}, v{12 + 2 * k}, v{13 + 2 * k}")
    for k in range(4):
        a(f"v_min_u32 v{24 + k}, -2, v{24 + k}")
    a("buffer_store_dwordx4 v[24:27], v50, s[12:15], s96 offen sc1")
    stamp(8)
    if not pq:
        a("s_barrier")
    if not notail:
        a("s_barrier")
        if stamps and not onebar:
            a("s_barrier")
    flush_stamps([1, 2, 3, 4, 5, 7, 8])
    a.label("L_end")
    a("s_endpgm")

    for p in check_hazards(a.L):
        print("HAZARD", p)
    hdr = open("cdna_kernels/" + NAME + ".s.ref").read().split("; Override launch")[0]
    open(path, "w").write(a.text(f"grid=(256,1,1) block=(512,1,1) lds={L_END + (4096 if pq else 0)}", 256, hdr))
    return len(a.L)


if __name__ == "__main__":
    print(gen("k22.s"))
    gen("k22_a.s", stamps=True, lt=0)
    gen("k22_b.s", stamps=True, lt=2, fback=9)
    gen("k22_c.s", stamps=True, lt=1, fback=9)
    gen("k22_d.s", stamps=True, lt=2, fback=4)
    gen("k22_e.s", stamps=True, lt=3, fback=0)
    gen("k22_f.s", stamps=True, lt=1, fback=4)
```

```python
import gen22
gen22.gen("final3.s")
s = open("final3.s").read()
doc = """;
"""
i = s.index("; @launch grid")
s = s[:i] + doc.lstrip("\n") + s[i:]
marks = {
 "    s_cbranch_scc1 L_service\n": "    ; ---- streamers: K loads (windowed)\n",
 "L_qwgo:\n": "    ; ---- scores, max, softmax numerators (V loads interleaved)\n",
 "    s_cbranch_scc1 L_aux\n": "    ; ---- roles 0..3: tile loads, gather o partials, wo / w2 products, publish\n",
 "L_fin:\n": "    ; ---- role 6: final reduction, gate mix, output\n",
 "L_service:\n": "    ; ---- service wave\n",
}
for k, v in marks.items():
    assert s.count(k) == 1, k
    s = s.replace(k, k + v)
open("final3.s","w").write(s)
```
